```python
import torch

def _softmax(x, axis=-1):
    return torch.softmax(x, dim=axis)
def _gelu(x):
    return torch.nn.functional.gelu(x, approximate="tanh")
def _silu(x):
    return torch.nn.functional.silu(x)
def _sigmoid(x):
    return torch.sigmoid(x)
def _layernorm(x, axis=-1, eps=1e-5):
    m = x.mean(dim=axis, keepdim=True)
    v = x.var(dim=axis, keepdim=True, unbiased=False)
    return (x - m) / torch.sqrt(v + eps)
def _scatter_add(tgt, idx, src, axis=0):
    return tgt.clone().index_add_(axis, idx, src)
def _segment_sum(src, seg, n):
    out = torch.zeros((n,) + src.shape[1:], dtype=src.dtype)
    return out.index_add_(0, seg, src)
def _pad(x, pw):
    flat = tuple(v for pair in reversed(pw) for v in pair)
    return torch.nn.functional.pad(x, flat)

kernel_name = 'sequential_preLN__mha_block_cached__dense_activation_squared_relu__decode'

def setup_inputs():

    _w = (lambda a: (lambda t: t.to(torch.bfloat16) if t.is_floating_point() else t)(torch.as_tensor(a)))
    def _A_setup():
        B, Sq, D = 2, 1, 640
        H, Sk, Dh = 32, 8192, 192
        return {
            "x": _w((lambda *s: torch.randn(*s, dtype=torch.bfloat16) * 0.05)(B, Sq, D)),
            "k_cache": _w((lambda *s: torch.randn(*s, dtype=torch.bfloat16) * 3.2)(B, H, Sk, Dh)),
            "v_cache": _w((lambda *s: torch.randn(*s, dtype=torch.bfloat16) * 0.4)(B, H, Sk, Dh)),
            "wq": _w((lambda *s: torch.randn(*s, dtype=torch.bfloat16) * 3.2)(D, H * Dh) * (D ** -0.5)),
            "wo": _w((lambda *s: torch.randn(*s, dtype=torch.bfloat16) * 0.4)(H * Dh, D) * ((H * Dh) ** -0.5)),
        }
    _A_in = _A_setup()

    def _B_setup():
        B, S, D, F = 2, 1, 640, 1536
        return {
            "x": _w((lambda *s: torch.randn(*s, dtype=torch.bfloat16) * 0.05)(B, S, D)),
            "w1": _w((lambda *s: torch.randn(*s, dtype=torch.bfloat16) * 0.05)(D, F)),
            "b1": _w((lambda *s: torch.randn(*s, dtype=torch.bfloat16) * 0.8)(F)),
            "w2": _w((lambda *s: torch.randn(*s, dtype=torch.bfloat16) * 0.05)(F, D)),
            "b2": _w((lambda *s: torch.randn(*s, dtype=torch.bfloat16) * 3.2)(D)),
        }
    _B_in = _B_setup()

    return {
        "A_x": _A_in["x"],
        "A_k_cache": _A_in["k_cache"],
        "A_v_cache": _A_in["v_cache"],
        "A_wq": _A_in["wq"],
        "A_wo": _A_in["wo"],
        "B_x": _B_in["x"],
        "B_w1": _B_in["w1"],
        "B_b1": _B_in["b1"],
        "B_w2": _B_in["w2"],
        "B_b2": _B_in["b2"],
    }

def reference(A_x, A_k_cache, A_v_cache, A_wq, A_wo, B_x, B_w1, B_b1, B_w2, B_b2):
    def _A_ref(x, k_cache, v_cache, wq, wo):
        B, Sq, D = x.shape
        H, Dh = 32, 192
        q = (lambda x, *d: x.permute(*d))((x @ wq).reshape(B, Sq, H, Dh), 0, 2, 1, 3)
        scores = torch.einsum("bhqd,bhkd->bhqk", q, k_cache) * (Dh ** -0.5)
        p = _softmax(scores, axis=-1)
        o = torch.einsum("bhqk,bhkd->bhqd", p, v_cache)
        return (lambda x, *d: x.permute(*d))(o, 0, 2, 1, 3).reshape(B, Sq, H * Dh) @ wo

    def _B_ref(x, w1, b1, w2, b2):
        h = torch.einsum("bsd,df->bsf", x, w1) + b1
        zero = torch.zeros_like(h)
        r = torch.where(h > zero, h, zero)
        h = r * r
        out = torch.einsum("bsf,fd->bsd", h, w2) + b2
        return out

    x = A_x
    h = x + _A_ref(_layernorm(x, axis=-1), A_k_cache, A_v_cache, A_wq, A_wo)
    h2 = h + _B_ref(_layernorm(h, axis=-1), B_w1, B_b1, B_w2, B_b2)
    return h2
```

```python
import struct

def f32bits(x):
    return struct.unpack("<I", struct.pack("<f", x))[0]

LOG2E = f32bits(1.4426950408889634)
SCALE = f32bits(192 ** -0.5)
EPS = f32bits(1e-5)
INV640 = f32bits(1.0 / 640.0)

DPP = "row_mask:0xf bank_mask:0xf"

class Emitter:
    def __init__(self):
        self.lines = []
    def __call__(self, s):
        for ln in s.strip("\n").split("\n"):
            self.lines.append("    " + ln.strip() if not ln.strip().endswith(":") else ln.strip())
    def raw(self, s):
        self.lines.append(s)
    def text(self):
        return "\n".join(self.lines) + "\n"

def rnd(e, v):
    e(f"v_cvt_pk_bf16_f32 v{v}, v{v}, v{v}")
    e(f"v_and_b32 v{v}, 0xffff0000, v{v}")

def row16_reduce(e, op, v, tmp):
    e("s_nop 1")
    e(f"{op}_dpp v{tmp}, v{v}, v{v} quad_perm:[1,0,3,2] {DPP}")
    e("s_nop 1")
    e(f"{op}_dpp v{v}, v{tmp}, v{tmp} quad_perm:[2,3,0,1] {DPP}")
    e("s_nop 1")
    e(f"{op}_dpp v{tmp}, v{v}, v{v} row_half_mirror {DPP}")
    e("s_nop 1")
    e(f"{op}_dpp v{v}, v{tmp}, v{tmp} row_mirror {DPP}")

def rows_combine(e, op, v, s0):
    e("s_nop 1")
    for i in range(4):
        e(f"v_readlane_b32 s{s0+i}, v{v}, {16*i}")
    e("s_nop 1")
    e(f"v_mov_b32 v{v}, s{s0}")
    for i in range(1, 4):
        e(f"{op} v{v}, s{s0+i}, v{v}")

def wave_reduce(e, op, v, tmp, s0):
    row16_reduce(e, op, v, tmp)
    rows_combine(e, op, v, s0)

def ln_compute(e, X, T, s0, sc):
    a, t, mean, sd, rinv, q0 = T, T+1, T+2, T+3, T+4, T+5
    e(f"v_add_f32 v{a}, v{X}, v{X+1}")
    for i in range(2, 10):
        e(f"v_add_f32 v{a}, v{a}, v{X+i}")
    wave_reduce(e, "v_add_f32", a, t, s0)
    e(f"v_mul_f32 v{mean}, 0x{INV640:08x}, v{a}")
    e(f"v_sub_f32 v{t}, v{X}, v{mean}")
    e(f"v_mul_f32 v{a}, v{t}, v{t}")
    for i in range(1, 10):
        e(f"v_sub_f32 v{t}, v{X+i}, v{mean}")
        e(f"v_fmac_f32 v{a}, v{t}, v{t}")
    wave_reduce(e, "v_add_f32", a, t, s0)
    e(f"v_mul_f32 v{a}, 0x{INV640:08x}, v{a}")
    rnd(e, a)
    rnd(e, mean)
    e(f"v_add_f32 v{a}, 0x{EPS:08x}, v{a}")
    rnd(e, a)
    e(f"v_sqrt_f32 v{sd}, v{a}")
    e("s_nop 0")
    rnd(e, sd)
    e(f"v_rcp_f32 v{rinv}, v{sd}")
    e("s_nop 0")
    for i in range(10):
        x = X + i
        e(f"v_sub_f32 v{x}, v{x}, v{mean}")
        rnd(e, x)
        e(f"v_mul_f32 v{q0}, v{x}, v{rinv}")
        e(f"v_fma_f32 v{t}, -v{q0}, v{sd}, v{x}")
        e(f"v_fma_f32 v{x}, v{t}, v{rinv}, v{q0}")
        rnd(e, x)

def kd(name, vgpr, sgpr=102):
    acc = (vgpr + 3) // 4 * 4
    return f""".amdhsa_kernel {name}
  .amdhsa_next_free_vgpr {vgpr}
  .amdhsa_next_free_sgpr {sgpr}
  .amdhsa_accum_offset {acc}
  .amdhsa_group_segment_fixed_size 0
  .amdhsa_kernarg_size 104
  .amdhsa_user_sgpr_count 2
  .amdhsa_user_sgpr_kernarg_segment_ptr 1
  .amdhsa_system_sgpr_workgroup_id_x 1
  .amdhsa_float_denorm_mode_32 3
.end_amdhsa_kernel
"""
```

```python
import sys
from common import *

NAME = "sequential_preLN__mha_block_cached__dense_activation_squared_relu__decode"
WS_Q = 0x0
WS_STATS = 0x8000
WS_OP = 0x10000
WS_A = 0x40000
WS_H = 0xE0000
WS_F = 0x100000

def header(e, name):
    e.raw(f".globl {name}")
    e.raw(".p2align 8")
    e.raw(f".type {name},@function")
    e.raw(f"{name}:")

def k1(e):
    header(e, "qproj_kernel")
    e("""
    s_cmp_ge_u32 s2, 192
    s_cbranch_scc1 K1_END
    s_load_dwordx2 s[4:5], s[0:1], 0
    s_load_dwordx2 s[6:7], s[0:1], 24
    s_load_dwordx2 s[8:9], s[0:1], 96
    v_and_b32 v1, 63, v0
    v_lshrrev_b32 v2, 6, v0
    s_nop 0
    v_readfirstlane_b32 s12, v2
    v_lshrrev_b32 v2, 2, v0
    v_mul_u32_u24 v3, 12288, v2
    v_and_b32 v4, 3, v0
    v_lshl_add_u32 v3, v4, 4, v3
    s_lshl_b32 s13, s2, 6
    v_add_u32 v3, s13, v3
    s_waitcnt lgkmcnt(0)
    """)
    W = 20
    for i in range(10):
        e(f"v_add_u32 v5, {i*786432}, v3")
        e(f"global_load_dwordx4 v[{W+4*i}:{W+4*i+3}], v5, s[6:7] nt")
    e(f"""
    s_cmp_ge_u32 s2, 8
    s_cbranch_scc1 K1_NOZERO
    s_lshl_b32 s13, s2, 10
    v_lshl_add_u32 v5, v0, 2, s13
    v_add_u32 v5, {WS_STATS}, v5
    v_mov_b32 v6, 0
    global_store_dword v5, v6, s[8:9]
    K1_NOZERO:
    s_cmp_ge_u32 s12, 2
    s_cbranch_scc1 K1_NOLN
    s_mul_i32 s13, s12, 1280
    v_lshl_add_u32 v5, v1, 2, s13
    """)
    X = 60
    for i in range(5):
        e(f"global_load_dword v{70+i}, v5, s[4:5] offset:{256*i}")
    e("s_waitcnt vmcnt(0)")
    for i in range(5):
        e(f"v_lshlrev_b32 v{X+2*i}, 16, v{70+i}")
        e(f"v_and_b32 v{X+2*i+1}, 0xffff0000, v{70+i}")
    ln_compute(e, X, 76, 20, 24)
    e("s_mul_i32 s13, s12, 2560")
    e("v_lshl_add_u32 v5, v1, 3, s13")
    for i in range(5):
        e(f"ds_write_b64 v5, v[{X+2*i}:{X+2*i+1}] offset:{512*i}")
    e("""
    K1_NOLN:
    s_waitcnt lgkmcnt(0)
    s_barrier
    v_lshlrev_b32 v5, 2, v2
    """)
    XN = 60
    for b in range(2):
        for i in range(10):
            e(f"ds_read_b32 v{XN+10*b+i}, v5 offset:{b*2560+i*256}")
    ACC = 80
    for k in range(16):
        e(f"v_mov_b32 v{ACC+k}, 0")
    e("s_waitcnt vmcnt(0) lgkmcnt(0)")
    for i in range(10):
        for b in range(2):
            xh = XN + 10*b + i
            e(f"v_lshrrev_b32 v6, 16, v{xh}")
            for j in range(4):
                e(f"v_dot2c_f32_bf16 v{ACC+8*b+2*j}, v{W+4*i+j}, v6")
                e(f"v_dot2c_f32_bf16 v{ACC+8*b+2*j+1}, v{W+4*i+j}, v{xh}")
    e("s_nop 3")
    e("v_lshlrev_b32 v5, 8, v2")
    e("v_lshl_add_u32 v5, v4, 6, v5")
    for k in range(4):
        e(f"ds_write_b128 v5, v[{ACC+4*k}:{ACC+4*k+3}] offset:{5120+16*k}")
    e("""
    s_waitcnt lgkmcnt(0)
    s_barrier
    s_cmp_lg_u32 s12, 0
    s_cbranch_scc1 K1_END
    v_lshlrev_b32 v5, 2, v0
    """)
    for r in range(64):
        e(f"ds_read_b32 v{100+r}, v5 offset:{5120+256*r}")
    e("s_waitcnt lgkmcnt(0)")
    for r in range(0, 64, 2):
        e(f"v_add_f32 v{100+r}, v{100+r}, v{101+r}")
    for r in range(0, 64, 4):
        e(f"v_add_f32 v{100+r}, v{100+r}, v{102+r}")
    for r in range(0, 64, 8):
        e(f"v_add_f32 v{100+r}, v{100+r}, v{104+r}")
    for r in range(0, 64, 16):
        e(f"v_add_f32 v{100+r}, v{100+r}, v{108+r}")
    e("v_add_f32 v100, v100, v116")
    e("v_add_f32 v132, v132, v148")
    e("v_add_f32 v100, v100, v132")
    rnd(e, 100)
    e("""
    v_lshrrev_b32 v5, 4, v0
    v_lshlrev_b32 v5, 3, v5
    v_and_b32 v6, 7, v0
    v_add_u32 v5, v5, v6
    v_bfe_u32 v6, v0, 3, 1
    v_mul_u32_u24 v6, 6144, v6
    v_add_u32 v5, v5, v6
    s_lshl_b32 s13, s2, 5
    v_add_u32 v5, s13, v5
    v_lshlrev_b32 v5, 1, v5
    """)
    e(f"global_store_short_d16_hi v5, v100, s[8:9] offset:{WS_Q}")
    e("K1_END:")
    e("s_endpgm")

def k2(e, D=8):
    header(e, "attn_kernel")
    Q = 4; ACC = 16; SC = 40; BUF = 104; T = BUF + 12*D
    e(f"""
    s_cmp_ge_u32 s2, 256
    s_cbranch_scc1 K2_END
    s_load_dwordx4 s[4:7], s[0:1], 8
    s_load_dwordx2 s[8:9], s[0:1], 96
    s_lshr_b32 s10, s2, 2
    s_and_b32 s11, s2, 3
    v_and_b32 v1, 63, v0
    v_lshrrev_b32 v2, 6, v0
    s_nop 0
    v_readfirstlane_b32 s12, v2
    v_lshrrev_b32 v2, 3, v1
    v_mul_u32_u24 v2, 384, v2
    v_and_b32 v3, 7, v1
    v_lshlrev_b32 v3, 4, v3
    v_add_u32 v2, v2, v3
    s_lshl_b32 s13, s11, 2
    s_add_u32 s13, s13, s12
    s_mul_i32 s13, s13, {512*384}
    v_add_u32 v2, s13, v2
    s_mul_i32 s13, s10, 384
    v_add_u32 v3, s13, v3
    s_mul_i32 s13, s10, 3145728
    s_mov_b32 s36, 0x{LOG2E:08x}
    s_mov_b32 s37, 0x{SCALE:08x}
    s_mov_b32 s24, 0
    s_mov_b32 s25, 0
    s_waitcnt lgkmcnt(0)
    s_add_u32 s16, s4, s13
    s_addc_u32 s17, s5, 0
    s_mov_b32 s18, 3145728
    s_mov_b32 s19, 0x00020000
    s_add_u32 s20, s6, s13
    s_addc_u32 s21, s7, 0
    s_mov_b32 s22, 3145728
    s_mov_b32 s23, 0x00020000
    """)
    for t in range(3):
        e(f"global_load_dwordx4 v[{Q+4*t}:{Q+4*t+3}], v3, s[8:9] offset:{WS_Q+128*t}")
    issued = []
    issued += [-1]*3
    def issue(g):
        slot = g % D
        B = BUF + 12*slot
        if g < 64:
            srd, so = "s[16:19]", "s24"
        else:
            srd, so = "s[20:23]", "s25"
        for t in range(3):
            e(f"buffer_load_dwordx4 v[{B+4*t}:{B+4*t+3}], v2, {srd}, {so} offen offset:{128*t} nt")
            issued.append(g)
        e(f"s_add_u32 {so}, {so}, 3072")
    def wait_for(g):
        idx = max(i for i, x in enumerate(issued) if x == g)
        n = len(issued) - 1 - idx
        e(f"s_waitcnt vmcnt({n})")
    for g in range(D):
        issue(g)
    for k in range(24):
        e(f"v_mov_b32 v{ACC+k}, 0")
    wait_for(-1)
    for g in range(64):
        B = BUF + 12*(g % D)
        wait_for(g)
        for t in range(3):
            e(f"v_mov_b32 v{T+t}, 0")
        for j in range(0, 4):
            for t in range(3):
                e(f"v_dot2c_f32_bf16 v{T+t}, v{B+4*t+j}, v{Q+4*t+j}")
        issue(g + D)
        e(f"v_add_f32 v{T}, v{T}, v{T+1}")
        e(f"v_add_f32 v{T}, v{T}, v{T+2}")
        e("s_nop 1")
        e(f"v_add_f32_dpp v{T+1}, v{T}, v{T} quad_perm:[1,0,3,2] {DPP}")
        e("s_nop 1")
        e(f"v_add_f32_dpp v{T}, v{T+1}, v{T+1} quad_perm:[2,3,0,1] {DPP}")
        e("s_nop 1")
        e(f"v_add_f32_dpp v{T+1}, v{T}, v{T} row_half_mirror {DPP}")
        rnd(e, T+1)
        e(f"v_mul_f32 v{SC+g}, s37, v{T+1}")
        rnd(e, SC+g)
    e(f"v_max3_f32 v{T}, v{SC}, v{SC+1}, v{SC+2}")
    for g in range(3, 63, 2):
        e(f"v_max3_f32 v{T}, v{T}, v{SC+g}, v{SC+g+1}")
    e(f"v_max_f32 v{T}, v{T}, v{SC+63}")
    e("s_nop 1")
    e(f"v_max_f32_dpp v{T+1}, v{T}, v{T} row_ror:8 {DPP}")
    rows_combine(e, "v_max_f32", T+1, 26)
    e(f"v_mov_b32 v{T+2}, 0")
    for g in range(64):
        e(f"v_sub_f32 v{T}, v{SC+g}, v{T+1}")
        e(f"v_mul_f32 v{T}, s36, v{T}")
        e(f"v_exp_f32 v{T}, v{T}")
        e("s_nop 0")
        e(f"v_add_f32 v{T+2}, v{T+2}, v{T}")
    e("s_nop 1")
    e(f"v_add_f32_dpp v{T+3}, v{T+2}, v{T+2} row_ror:8 {DPP}")
    rows_combine(e, "v_add_f32", T+3, 26)
    e(f"v_mov_b32 v{T+4}, v{T+1}")
    e(f"v_mov_b32 v{T+5}, v{T+3}")
    e(f"""
    s_lshl_b32 s13, s10, 7
    s_and_b32 s14, s2, 3
    s_lshl_b32 s14, s14, 2
    s_add_u32 s14, s14, s12
    s_lshl_b32 s14, s14, 3
    s_add_u32 s13, s13, {WS_STATS}
    s_add_u32 s14, s14, s13
    v_mov_b32 v{T+6}, s14
    v_lshl_add_u32 v{T+7}, v1, 3, s13
    s_mov_b64 s[40:41], exec
    s_mov_b64 exec, 1
    global_store_dwordx2 v{T+6}, v[{T+4}:{T+5}], s[8:9] sc1
    s_mov_b64 exec, 0xffff
    K2_POLL:
    global_load_dwordx2 v[{T+4}:{T+5}], v{T+7}, s[8:9] sc1
    s_waitcnt vmcnt(0)
    v_cmp_neq_f32 vcc, 0, v{T+5}
    s_nop 1
    s_cmp_eq_u64 vcc, exec
    s_cbranch_scc1 K2_GOT
    s_sleep 2
    s_branch K2_POLL
    K2_GOT:
    v_mov_b32 v{T}, v{T+4}
    """)
    issued.clear()
    row16_reduce(e, "v_max_f32", T, T+1)
    e(f"v_sub_f32 v{T+1}, v{T+4}, v{T}")
    e(f"v_mul_f32 v{T+1}, s36, v{T+1}")
    e(f"v_exp_f32 v{T+1}, v{T+1}")
    e("s_nop 0")
    e(f"v_mul_f32 v{T+1}, v{T+1}, v{T+5}")
    row16_reduce(e, "v_add_f32", T+1, T+2)
    e(f"v_rcp_f32 v{T+2}, v{T+1}")
    e("s_nop 0")
    e(f"v_fma_f32 v{T+3}, -v{T+1}, v{T+2}, 1.0")
    e(f"v_fma_f32 v{T+2}, v{T+3}, v{T+2}, v{T+2}")
    e("s_nop 0")
    e(f"v_readfirstlane_b32 s38, v{T}")
    e(f"v_readfirstlane_b32 s39, v{T+2}")
    e("s_mov_b64 exec, s[40:41]")
    e("s_nop 1")
    for g in range(64):
        e(f"v_subrev_f32 v{T}, s38, v{SC+g}")
        e(f"v_mul_f32 v{T}, s36, v{T}")
        e(f"v_exp_f32 v{T}, v{T}")
        e("s_nop 0")
        e(f"v_mul_f32 v{T}, s39, v{T}")
        e(f"v_cvt_pk_bf16_f32 v{SC+g}, v{T}, 0")
    for gi in range(64):
        g = 64 + gi
        B = BUF + 12*(g % D)
        if g in issued:
            wait_for(g)
        e(f"v_lshlrev_b32 v{T}, 16, v{SC+gi}")
        for t in range(3):
            for j in range(4):
                e(f"v_dot2c_f32_bf16 v{ACC+8*t+2*j}, v{B+4*t+j}, v{SC+gi}")
                e(f"v_dot2c_f32_bf16 v{ACC+8*t+2*j+1}, v{B+4*t+j}, v{T}")
        if g + D < 128:
            issue(g + D)
    e(f"""
    s_nop 3
    v_lshrrev_b32 v{T}, 3, v0
    v_mul_u32_u24 v{T}, 768, v{T}
    v_and_b32 v{T+1}, 7, v1
    v_lshl_add_u32 v{T}, v{T+1}, 5, v{T}
    """)
    for t in range(3):
        e(f"ds_write_b128 v{T}, v[{ACC+8*t}:{ACC+8*t+3}] offset:{256*t}")
        e(f"ds_write_b128 v{T}, v[{ACC+8*t+4}:{ACC+8*t+7}] offset:{256*t+16}")
    e(f"""
    s_waitcnt lgkmcnt(0)
    s_barrier
    v_cmp_gt_u32 vcc, 192, v0
    s_and_saveexec_b64 s[40:41], vcc
    s_cbranch_execz K2_END
    v_lshlrev_b32 v{T}, 2, v0
    """)
    for r in range(32):
        e(f"ds_read_b32 v{SC+r}, v{T} offset:{768*r}")
    e("s_waitcnt lgkmcnt(0)")
    for st in (1, 2, 4, 8, 16):
        for r in range(0, 32, 2*st):
            e(f"v_add_f32 v{SC+r}, v{SC+r}, v{SC+r+st}")
    e(f"""
    s_mul_i32 s13, s2, 768
    s_add_u32 s13, s13, {WS_OP}
    v_add_u32 v{T}, s13, v{T}
    global_store_dword v{T}, v{SC}, s[8:9]
    K2_END:
    s_endpgm
    """)
    return T + 8

def k3(e):
    header(e, "oproj_kernel")
    e(f"""
    s_cmp_ge_u32 s2, 256
    s_cbranch_scc1 K3_END
    s_load_dwordx2 s[6:7], s[0:1], 32
    s_load_dwordx2 s[8:9], s[0:1], 96
    s_lshr_b32 s10, s2, 2
    s_and_b32 s11, s2, 3
    s_and_b32 s12, s10, 31
    v_mul_u32_u24 v1, 205, v0
    v_lshrrev_b32 v1, 14, v1
    v_mul_u32_u24 v2, 80, v1
    v_sub_u32 v2, v0, v2
    s_mul_i32 s13, s12, 192
    s_mul_i32 s14, s11, 48
    s_add_u32 s13, s13, s14
    v_lshl_add_u32 v3, v1, 4, s13
    v_mul_u32_u24 v3, 1280, v3
    v_lshl_add_u32 v3, v2, 4, v3
    s_waitcnt lgkmcnt(0)
    v_cmp_gt_u32 vcc, 240, v0
    s_and_saveexec_b64 s[40:41], vcc
    """)
    W = 20
    for k in range(16):
        if k and k % 3 == 0:
            e("v_add_u32 v3, 3840, v3")
        e(f"global_load_dwordx4 v[{W+4*k}:{W+4*k+3}], v3, s[6:7] offset:{1280*(k%3)} nt")
    e(f"""
    s_mov_b64 exec, s[40:41]
    v_cmp_gt_u32 vcc, 48, v0
    s_and_saveexec_b64 s[40:41], vcc
    s_cbranch_execz K3_NOO
    s_mul_i32 s13, s10, 3072
    s_mul_i32 s14, s11, 192
    s_add_u32 s13, s13, s14
    s_add_u32 s13, s13, {WS_OP}
    v_lshl_add_u32 v4, v0, 2, s13
    global_load_dword v5, v4, s[8:9]
    global_load_dword v6, v4, s[8:9] offset:768
    global_load_dword v7, v4, s[8:9] offset:1536
    global_load_dword v8, v4, s[8:9] offset:2304
    s_waitcnt vmcnt(0)
    v_add_f32 v5, v5, v6
    v_add_f32 v7, v7, v8
    v_add_f32 v5, v5, v7
    """)
    rnd(e, 5)
    e(f"""
    v_lshlrev_b32 v4, 2, v0
    ds_write_b32 v4, v5
    K3_NOO:
    s_mov_b64 exec, s[40:41]
    s_waitcnt lgkmcnt(0)
    s_barrier
    v_min_u32 v4, 2, v1
    v_lshlrev_b32 v4, 6, v4
    """)
    O = 84
    for k in range(4):
        e(f"ds_read_b128 v[{O+4*k}:{O+4*k+3}], v4 offset:{16*k}")
    A = 100
    for k in range(8):
        e(f"v_mov_b32 v{A+k}, 0")
    e("s_waitcnt vmcnt(0) lgkmcnt(0)")
    for k in range(16):
        e(f"v_lshrrev_b32 v5, 16, v{O+k}")
        for j in range(4):
            e(f"v_dot2c_f32_bf16 v{A+2*j}, v{W+4*k+j}, v5")
            e(f"v_dot2c_f32_bf16 v{A+2*j+1}, v{W+4*k+j}, v{O+k}")
    e(f"""
    s_nop 3
    v_mul_u32_u24 v4, 2560, v1
    v_lshl_add_u32 v4, v2, 5, v4
    v_cmp_gt_u32 vcc, 240, v0
    s_and_saveexec_b64 s[40:41], vcc
    ds_write_b128 v4, v[{A}:{A+3}] offset:256
    ds_write_b128 v4, v[{A+4}:{A+7}] offset:272
    s_mov_b64 exec, s[40:41]
    s_waitcnt lgkmcnt(0)
    s_barrier
    v_cmp_gt_u32 vcc, 160, v0
    s_and_saveexec_b64 s[40:41], vcc
    s_cbranch_execz K3_END
    v_lshlrev_b32 v4, 4, v0
    ds_read_b128 v[8:11], v4 offset:256
    ds_read_b128 v[12:15], v4 offset:{256+2560}
    ds_read_b128 v[16:19], v4 offset:{256+5120}
    s_waitcnt lgkmcnt(0)
    """)
    for k in range(4):
        e(f"v_add_f32 v{8+k}, v{8+k}, v{12+k}")
        e(f"v_add_f32 v{8+k}, v{8+k}, v{16+k}")
    e(f"""
    s_mul_i32 s13, s2, 2560
    s_add_u32 s13, s13, {WS_A}
    v_add_u32 v4, s13, v4
    global_store_dwordx4 v4, v[8:11], s[8:9]
    K3_END:
    s_endpgm
    """)

def reduce8(e, lbl):
    e(f"""
    s_waitcnt lgkmcnt(0)
    s_barrier
    s_cmp_lg_u32 s12, 0
    s_cbranch_scc1 {lbl}
    v_lshrrev_b32 v4, 3, v0
    v_lshlrev_b32 v4, 9, v4
    v_and_b32 v5, 7, v0
    v_lshl_add_u32 v4, v5, 2, v4
    """)
    for r in range(16):
        e(f"ds_read_b32 v{20+r}, v4 offset:{32*r}")
    e("s_waitcnt lgkmcnt(0)")
    for st in (1, 2, 4, 8):
        for r in range(0, 16, 2*st):
            e(f"v_add_f32 v{20+r}, v{20+r}, v{20+r+st}")
    e("v_lshlrev_b32 v4, 2, v0")
    e("ds_write_b32 v4, v20 offset:4096")
    e("s_waitcnt lgkmcnt(0)")
    e("v_lshlrev_b32 v4, 2, v5")
    for p in range(8):
        e(f"ds_read_b32 v{20+p}, v4 offset:{4096+32*p}")
    e("s_waitcnt lgkmcnt(0)")
    for st in (1, 2, 4):
        for r in range(0, 8, 2*st):
            e(f"v_add_f32 v{20+r}, v{20+r}, v{20+r+st}")
    e("v_mov_b32 v10, v20")

def k3b(e):
    header(e, "hred_kernel")
    e(f"""
    s_cmp_ge_u32 s2, 160
    s_cbranch_scc1 K3B_END
    s_load_dwordx2 s[4:5], s[0:1], 0
    s_load_dwordx2 s[8:9], s[0:1], 96
    s_cmp_ge_u32 s2, 80
    s_cselect_b32 s10, 1, 0
    s_mul_i32 s11, s10, 80
    s_sub_u32 s11, s2, s11
    v_lshrrev_b32 v2, 6, v0
    s_nop 0
    v_readfirstlane_b32 s12, v2
    v_lshrrev_b32 v2, 1, v0
    v_mul_u32_u24 v2, 2560, v2
    v_and_b32 v3, 1, v0
    v_lshl_add_u32 v2, v3, 4, v2
    s_mul_i32 s13, s10, {128*2560}
    s_lshl_b32 s14, s11, 5
    s_add_u32 s13, s13, s14
    s_add_u32 s13, s13, {WS_A}
    v_add_u32 v2, s13, v2
    s_waitcnt lgkmcnt(0)
    global_load_dwordx4 v[8:11], v2, s[8:9]
    v_lshlrev_b32 v4, 4, v0
    s_waitcnt vmcnt(0)
    ds_write_b128 v4, v[8:11]
    """)
    reduce8(e, "K3B_END")
    rnd(e, 10)
    e(f"""
    v_cmp_gt_u32 vcc, 8, v0
    s_and_saveexec_b64 s[40:41], vcc
    s_mul_i32 s13, s10, 640
    s_lshl_b32 s14, s11, 3
    s_add_u32 s13, s13, s14
    v_add_u32 v4, s13, v0
    v_lshlrev_b32 v5, 1, v4
    global_load_ushort v6, v5, s[4:5]
    s_waitcnt vmcnt(0)
    v_lshlrev_b32 v6, 16, v6
    v_add_f32 v10, v6, v10
    """)
    rnd(e, 10)
    e(f"""
    v_lshlrev_b32 v5, 2, v4
    v_add_u32 v5, {WS_H}, v5
    global_store_dword v5, v10, s[8:9]
    K3B_END:
    s_endpgm
    """)

def k4(e):
    header(e, "ffn_kernel")
    RED = 6144; RED2 = 22528; R2 = 23552
    e(f"""
    s_cmp_ge_u32 s2, 192
    s_cbranch_scc1 K4_END
    s_load_dwordx4 s[4:7], s[0:1], 48
    s_load_dwordx2 s[16:17], s[0:1], 64
    s_load_dwordx2 s[8:9], s[0:1], 96
    v_and_b32 v1, 63, v0
    v_lshrrev_b32 v2, 6, v0
    s_nop 0
    v_readfirstlane_b32 s12, v2
    s_lshl_b32 s13, s2, 4
    v_mul_u32_u24 v3, 3072, v0
    v_add_u32 v3, s13, v3
    v_add_u32 v4, 512, v0
    v_min_u32 v4, 639, v4
    v_mul_u32_u24 v4, 3072, v4
    v_add_u32 v4, s13, v4
    v_add_u32 v5, {256*3072}, v3
    v_mul_u32_u24 v6, 205, v0
    v_lshrrev_b32 v6, 14, v6
    v_mul_u32_u24 v7, 80, v6
    v_sub_u32 v7, v0, v7
    s_mul_i32 s13, s2, {8*1280}
    v_lshl_add_u32 v8, v7, 4, s13
    s_waitcnt lgkmcnt(0)
    global_load_dwordx4 v[20:23], v3, s[4:5] nt
    global_load_dwordx4 v[24:27], v5, s[4:5] nt
    global_load_dwordx4 v[28:31], v4, s[4:5] nt
    """)
    W2 = 32
    for k in range(8):
        if k and k % 3 == 0:
            e("v_add_u32 v8, 3840, v8")
        e(f"global_load_dwordx4 v[{W2+4*k}:{W2+4*k+3}], v8, s[16:17] offset:{1280*(k%3)} nt")
    e(f"""
    s_cmp_ge_u32 s12, 2
    s_cbranch_scc1 K4_NOLN
    s_mul_i32 s13, s12, 2560
    s_add_u32 s13, s13, {WS_H}
    v_lshl_add_u32 v9, v1, 3, s13
    """)
    X = 64
    for i in range(5):
        e(f"global_load_dwordx2 v[{X+2*i}:{X+2*i+1}], v9, s[8:9] offset:{512*i}")
    e("s_waitcnt vmcnt(0)")
    ln_compute(e, X, 76, 20, 24)
    e("s_mul_i32 s13, s12, 3072")
    e("v_lshl_add_u32 v9, v1, 3, s13")
    for i in range(5):
        e(f"ds_write_b64 v9, v[{X+2*i}:{X+2*i+1}] offset:{512*i}")
    e("v_mov_b32 v10, 0")
    e("v_mov_b32 v11, 0")
    e("ds_write_b64 v9, v[10:11] offset:2560")
    e(f"""
    K4_NOLN:
    s_waitcnt lgkmcnt(0)
    s_barrier
    v_lshlrev_b32 v9, 2, v0
    """)
    HN = 64
    for b in range(2):
        for i in range(3):
            e(f"ds_read_b32 v{HN+3*b+i}, v9 offset:{b*3072+i*1024}")
    ACC = 84
    for k in range(16):
        e(f"v_mov_b32 v{ACC+k}, 0")
    e("s_waitcnt vmcnt(8) lgkmcnt(0)")
    for i in range(3):
        for b in range(2):
            xh = HN + 3*b + i
            e(f"v_lshrrev_b32 v10, 16, v{xh}")
            for j in range(4):
                e(f"v_dot2c_f32_bf16 v{ACC+8*b+2*j}, v{20+4*i+j}, v10")
                e(f"v_dot2c_f32_bf16 v{ACC+8*b+2*j+1}, v{20+4*i+j}, v{xh}")
    e("s_nop 3")
    e("v_lshlrev_b32 v9, 6, v0")
    for k in range(4):
        e(f"ds_write_b128 v9, v[{ACC+4*k}:{ACC+4*k+3}] offset:{RED+16*k}")
    e(f"""
    s_waitcnt lgkmcnt(0)
    s_barrier
    v_lshrrev_b32 v9, 4, v0
    v_lshlrev_b32 v9, 10, v9
    v_and_b32 v10, 15, v0
    v_lshl_add_u32 v9, v10, 2, v9
    """)
    for r in range(16):
        e(f"ds_read_b32 v{100+r}, v9 offset:{RED+64*r}")
    e("s_waitcnt lgkmcnt(0)")
    for st in (1, 2, 4, 8):
        for r in range(0, 16, 2*st):
            e(f"v_add_f32 v{100+r}, v{100+r}, v{100+r+st}")
    e(f"""
    v_lshlrev_b32 v9, 2, v0
    ds_write_b32 v9, v100 offset:{RED2}
    s_waitcnt lgkmcnt(0)
    s_barrier
    v_cmp_gt_u32 vcc, 16, v0
    s_and_saveexec_b64 s[40:41], vcc
    s_cbranch_execz K4_NOACT
    """)
    for r in range(16):
        e(f"ds_read_b32 v{100+r}, v9 offset:{RED2+64*r}")
    e(f"""
    v_and_b32 v10, 7, v0
    s_lshl_b32 s13, s2, 3
    v_add_u32 v10, s13, v10
    v_lshlrev_b32 v10, 1, v10
    global_load_ushort v11, v10, s[6:7]
    s_waitcnt lgkmcnt(0)
    """)
    for st in (1, 2, 4, 8):
        for r in range(0, 16, 2*st):
            e(f"v_add_f32 v{100+r}, v{100+r}, v{100+r+st}")
    rnd(e, 100)
    e("s_waitcnt vmcnt(0)")
    e("v_lshlrev_b32 v11, 16, v11")
    e("v_add_f32 v100, v100, v11")
    rnd(e, 100)
    e("v_max_f32 v100, 0, v100")
    e("v_mul_f32 v100, v100, v100")
    rnd(e, 100)
    e(f"""
    ds_write_b32 v9, v100 offset:{R2}
    K4_NOACT:
    s_mov_b64 exec, s[40:41]
    s_waitcnt lgkmcnt(0)
    s_barrier
    v_cmp_gt_u32 vcc, 160, v0
    s_and_saveexec_b64 s[40:41], vcc
    s_cbranch_execz K4_END
    v_lshlrev_b32 v9, 5, v6
    ds_read_b128 v[100:103], v9 offset:{R2}
    ds_read_b128 v[104:107], v9 offset:{R2+16}
    """)
    for k in range(8):
        e(f"v_mov_b32 v{ACC+k}, 0")
    e("s_waitcnt vmcnt(0) lgkmcnt(0)")
    for k in range(8):
        e(f"v_lshrrev_b32 v10, 16, v{100+k}")
        for j in range(4):
            e(f"v_dot2c_f32_bf16 v{ACC+2*j}, v{W2+4*k+j}, v10")
            e(f"v_dot2c_f32_bf16 v{ACC+2*j+1}, v{W2+4*k+j}, v{100+k}")
    e(f"""
    s_nop 3
    s_mul_i32 s13, s2, 5120
    s_add_u32 s13, s13, {WS_F}
    v_mul_u32_u24 v9, 2560, v6
    v_lshl_add_u32 v9, v7, 5, v9
    v_add_u32 v9, s13, v9
    global_store_dwordx4 v9, v[{ACC}:{ACC+3}], s[8:9]
    global_store_dwordx4 v9, v[{ACC+4}:{ACC+7}], s[8:9] offset:16
    K4_END:
    s_endpgm
    """)

def k5(e):
    header(e, "final_kernel")
    e(f"""
    s_cmp_ge_u32 s2, 160
    s_cbranch_scc1 K5_END
    s_load_dwordx4 s[4:7], s[0:1], 72
    s_load_dwordx2 s[8:9], s[0:1], 96
    s_cmp_ge_u32 s2, 80
    s_cselect_b32 s10, 1, 0
    s_mul_i32 s11, s10, 80
    s_sub_u32 s11, s2, s11
    v_lshrrev_b32 v2, 6, v0
    s_nop 0
    v_readfirstlane_b32 s12, v2
    v_lshrrev_b32 v2, 1, v0
    v_mul_u32_u24 v2, 5120, v2
    v_and_b32 v3, 1, v0
    v_lshl_add_u32 v2, v3, 4, v2
    s_mul_i32 s13, s10, 2560
    s_lshl_b32 s14, s11, 5
    s_add_u32 s13, s13, s14
    s_add_u32 s13, s13, {WS_F}
    v_add_u32 v2, s13, v2
    v_add_u32 v3, {128*5120}, v2
    v_mov_b32 v12, 0
    v_mov_b32 v13, 0
    v_mov_b32 v14, 0
    v_mov_b32 v15, 0
    s_waitcnt lgkmcnt(0)
    global_load_dwordx4 v[8:11], v2, s[8:9]
    s_cmp_ge_u32 s12, 2
    s_cbranch_scc1 K5_NO2
    global_load_dwordx4 v[12:15], v3, s[8:9]
    K5_NO2:
    v_lshlrev_b32 v4, 4, v0
    s_waitcnt vmcnt(0)
    """)
    for k in range(4):
        e(f"v_add_f32 v{8+k}, v{8+k}, v{12+k}")
    e("ds_write_b128 v4, v[8:11]")
    reduce8(e, "K5_END")
    rnd(e, 10)
    e(f"""
    v_cmp_gt_u32 vcc, 8, v0
    s_and_saveexec_b64 s[40:41], vcc
    s_lshl_b32 s14, s11, 3
    v_add_u32 v4, s14, v0
    v_lshlrev_b32 v5, 1, v4
    global_load_ushort v6, v5, s[4:5]
    s_mul_i32 s13, s10, 640
    v_add_u32 v4, s13, v4
    v_lshlrev_b32 v5, 2, v4
    v_add_u32 v5, {WS_H}, v5
    global_load_dword v7, v5, s[8:9]
    s_waitcnt vmcnt(0)
    v_lshlrev_b32 v6, 16, v6
    v_add_f32 v10, v10, v6
    """)
    rnd(e, 10)
    e("v_add_f32 v10, v7, v10")
    rnd(e, 10)
    e(f"""
    v_lshlrev_b32 v5, 1, v4
    global_store_short_d16_hi v5, v10, s[6:7]
    K5_END:
    s_endpgm
    """)

def main(out, D=8):
    e = Emitter()
    src = open("cdna_kernels/" + NAME + ".s.ref").read().split("\n")
    for ln in src:
        if ln.startswith(";") and "@launch" not in ln:
            e.raw(ln)
    e.raw("; @launch kernel=qproj_kernel grid=(192,1,1) block=(256,1,1) lds=21504")
    e.raw("; @launch kernel=attn_kernel grid=(256,1,1) block=(256,1,1) lds=24576")
    e.raw("; @launch kernel=oproj_kernel grid=(256,1,1) block=(256,1,1) lds=8192")
    e.raw("; @launch kernel=hred_kernel grid=(160,1,1) block=(256,1,1) lds=4608")
    e.raw("; @launch kernel=ffn_kernel grid=(192,1,1) block=(256,1,1) lds=23616")
    e.raw("; @launch kernel=final_kernel grid=(160,1,1) block=(256,1,1) lds=4608")
    e.raw('.amdgcn_target "amdgcn-amd-amdhsa--gfx950"')
    e.raw(".text")
    k1(e); nv = k2(e, D); k3(e); k3b(e); k4(e); k5(e)
    e.raw('.section .rodata,"a"')
    e.raw(".p2align 6")
    for name, v in (("qproj_kernel", 164), ("attn_kernel", nv), ("oproj_kernel", 108), ("hred_kernel", 40), ("ffn_kernel", 116), ("final_kernel", 40)):
        e.raw(".p2align 6")
        e.raw(kd(name, v))
    open(out, "w").write(e.text())

if __name__ == "__main__":
    main(sys.argv[1] if len(sys.argv) > 1 else "cdna_kernels/" + NAME + ".s")
```

```python
import sys
from common import *

NAME = "sequential_preLN__mha_block_cached__dense_activation_squared_relu__decode"
KN = NAME + "_kernel"
BLK = 8704
O_H, O_ST, O_OP, O_A, O_F = 0, 32, 64, 832, 3392
L_RED, L_XN, L_QL = 0, 24576, 27136
LDS_BYTES = 27648

def spin(e, lbl, loads, regs, tmp):
    e(f"{lbl}:")
    for l in loads:
        e(l)
    e("s_waitcnt vmcnt(0)")
    e(f"v_and_b32 v{tmp}, 1, v{regs[0]}")
    for r in regs[1:]:
        e(f"v_and_b32 v{tmp}, v{tmp}, v{r}")
    e(f"v_cmp_eq_u32 vcc, 1, v{tmp}")
    e("s_nop 1")
    e("s_cmp_eq_u64 vcc, exec")
    e(f"s_cbranch_scc1 {lbl}_OK")
    e("s_sleep 1")
    e(f"s_branch {lbl}")
    e(f"{lbl}_OK:")

def gen(D=12):
    e = Emitter()
    Q = 4; ACC = 16; SC = 40; BUF = 104; T = BUF + 12*D
    assert T + 8 <= 256
    WS = "s[88:89]"
    e.raw(f".globl {KN}")
    e.raw(".p2align 8")
    e.raw(f".type {KN},@function")
    e.raw(f"{KN}:")
    e(f"""
    s_cmp_ge_u32 s2, 256
    s_cbranch_scc1 L_END
    s_load_dwordx16 s[64:79], s[0:1], 0
    s_load_dwordx8 s[80:87], s[0:1], 64
    s_load_dwordx2 s[88:89], s[0:1], 96
    s_and_b32 s13, s2, 7
    s_lshr_b32 s3, s2, 3
    s_lshl_b32 s14, s13, 2
    s_lshr_b32 s13, s3, 3
    s_add_u32 s14, s14, s13
    s_bfe_u32 s15, s3, 0x10002
    s_and_b32 s11, s3, 3
    s_lshl_b32 s10, s15, 5
    s_add_u32 s10, s10, s14
    s_lshl_b32 s3, s10, 2
    s_add_u32 s3, s3, s11
    v_and_b32 v1, 63, v0
    v_lshrrev_b32 v2, 6, v0
    s_nop 0
    v_readfirstlane_b32 s12, v2
    v_lshrrev_b32 v{T}, 3, v1
    v_and_b32 v{T+1}, 7, v1
    v_lshlrev_b32 v{T+1}, 4, v{T+1}
    v_mul_u32_u24 v2, 384, v{T}
    v_add_u32 v2, v2, v{T+1}
    s_lshl_b32 s13, s11, 2
    s_add_u32 s13, s13, s12
    s_mul_i32 s13, s13, {512*384}
    v_add_u32 v2, s13, v2
    v_mul_u32_u24 v3, 12288, v{T}
    v_add_u32 v3, v3, v{T+1}
    s_mul_i32 s13, s12, {160*12288}
    v_add_u32 v3, s13, v3
    s_mov_b32 s36, 0x{LOG2E:08x}
    s_mov_b32 s37, 0x{SCALE:08x}
    s_mov_b32 s24, 0
    s_mov_b32 s25, 0
    s_mov_b32 s26, 0
    s_mul_i32 s42, s3, {BLK}
    v_lshl_add_u32 v{T+2}, v0, 4, s42
    v_mov_b32 v{T+4}, 0
    v_mov_b32 v{T+5}, 0
    v_mov_b32 v{T+6}, 0
    v_mov_b32 v{T+7}, 0
    s_mul_i32 s13, s10, 3145728
    s_waitcnt lgkmcnt(0)
    s_add_u32 s16, s66, s13
    s_addc_u32 s17, s67, 0
    s_mov_b32 s18, 3145728
    s_mov_b32 s19, 0x00020000
    s_add_u32 s20, s68, s13
    s_addc_u32 s21, s69, 0
    s_mov_b32 s22, 3145728
    s_mov_b32 s23, 0x00020000
    s_mul_i32 s13, s14, 384
    s_add_u32 s28, s70, s13
    s_addc_u32 s29, s71, 0
    s_sub_u32 s30, {640*12288}, s13
    s_mov_b32 s31, 0x00020000
    s_mov_b32 s32, s72
    s_mov_b32 s33, s73
    s_mov_b32 s34, {6144*1280}
    s_mov_b32 s35, 0x00020000
    """)
    issued = []
    e(f"""
    s_cmp_lg_u32 s12, 0
    s_cbranch_scc1 L_NOX
    s_mul_i32 s13, s15, 1280
    v_lshl_add_u32 v{T+3}, v1, 2, s13
    """)
    for i in range(5):
        e(f"global_load_dword v{SC+30+i}, v{T+3}, s[64:65] offset:{256*i}")
    e("L_NOX:")
    e(f"global_store_dwordx4 v{T+2}, v[{T+4}:{T+7}], {WS} sc1")
    e(f"v_add_u32 v{T+3}, 4096, v{T+2}")
    e(f"global_store_dwordx4 v{T+3}, v[{T+4}:{T+7}], {WS} sc1")
    e(f"v_cmp_gt_u32 vcc, 20, v0")
    e("s_and_saveexec_b64 s[40:41], vcc")
    e(f"v_add_u32 v{T+3}, 8192, v{T+2}")
    e(f"global_store_dwordx4 v{T+3}, v[{T+4}:{T+7}], {WS} sc1")
    e("s_mov_b64 exec, s[40:41]")
    NW = 20
    NTOT = NW + 128
    def issue(i):
        B = BUF + 12*(i % D)
        if i < NW:
            srd, so, step, pol, vo = "s[28:31]", "s26", 98304, "", "v3"
        elif i < NW + 64:
            srd, so, step, pol, vo = "s[16:19]", "s24", 3072, " nt", "v2"
        else:
            srd, so, step, pol, vo = "s[20:23]", "s25", 3072, " nt", "v2"
        for t in range(3):
            e(f"buffer_load_dwordx4 v[{B+4*t}:{B+4*t+3}], {vo}, {srd}, {so} offen offset:{128*t}{pol}")
            issued.append(i)
        e(f"s_add_u32 {so}, {so}, {step}")
    def wait_for(i):
        idx = max(k for k, x in enumerate(issued) if x == i)
        n = len(issued) - 1 - idx
        e(f"s_waitcnt vmcnt({n})")
    for i in range(D):
        issue(i)
    for k in range(24):
        e(f"v_mov_b32 v{ACC+k}, 0")
    e(f"""
    s_cmp_lg_u32 s12, 0
    s_cbranch_scc1 L_NOLN
    s_waitcnt vmcnt({3*D+3})
    """)
    X = SC + 40
    for i in range(5):
        e(f"v_lshlrev_b32 v{X+2*i}, 16, v{SC+30+i}")
        e(f"v_and_b32 v{X+2*i+1}, 0xffff0000, v{SC+30+i}")
    ln_compute(e, X, SC+50, 44, 48)
    e(f"v_lshlrev_b32 v{T}, 3, v1")
    for i in range(5):
        e(f"ds_write_b64 v{T}, v[{X+2*i}:{X+2*i+1}] offset:{L_XN+512*i}")
    e(f"""
    L_NOLN:
    s_waitcnt lgkmcnt(0)
    s_barrier
    v_lshrrev_b32 v{T}, 3, v1
    s_mul_i32 s13, s12, 160
    v_add_u32 v{T}, s13, v{T}
    v_lshlrev_b32 v{T}, 2, v{T}
    """)
    for g in range(NW):
        e(f"ds_read_b32 v{SC+g}, v{T} offset:{L_XN+32*g}")
    e("s_waitcnt lgkmcnt(0)")
    for g in range(NW):
        B = BUF + 12*(g % D)
        wait_for(g)
        e(f"v_lshrrev_b32 v{T}, 16, v{SC+g}")
        for t in range(3):
            for j in range(4):
                e(f"v_dot2c_f32_bf16 v{ACC+8*t+2*j}, v{B+4*t+j}, v{T}")
                e(f"v_dot2c_f32_bf16 v{ACC+8*t+2*j+1}, v{B+4*t+j}, v{SC+g}")
        issue(g + D)
    def lds_reduce192(tag):
        e(f"""
        s_nop 3
        v_lshrrev_b32 v{T}, 3, v0
        v_mul_u32_u24 v{T}, 768, v{T}
        v_and_b32 v{T+1}, 7, v1
        v_lshl_add_u32 v{T}, v{T+1}, 5, v{T}
        """)
        for t in range(3):
            e(f"ds_write_b128 v{T}, v[{ACC+8*t}:{ACC+8*t+3}] offset:{L_RED+256*t}")
            e(f"ds_write_b128 v{T}, v[{ACC+8*t+4}:{ACC+8*t+7}] offset:{L_RED+256*t+16}")
        e(f"""
        s_waitcnt lgkmcnt(0)
        s_barrier
        v_cmp_gt_u32 vcc, 192, v0
        s_and_saveexec_b64 s[40:41], vcc
        s_cbranch_execz L_RS_{tag}
        v_lshlrev_b32 v{T}, 2, v0
        """)
        for r in range(32):
            e(f"ds_read_b32 v{SC+r}, v{T} offset:{L_RED+768*r}")
        e("s_waitcnt lgkmcnt(0)")
        for st in (1, 2, 4, 8, 16):
            for r in range(0, 32, 2*st):
                e(f"v_add_f32 v{SC+r}, v{SC+r}, v{SC+r+st}")
    lds_reduce192("q")
    rnd(e, SC)
    e(f"v_lshlrev_b32 v{T}, 1, v0")
    e(f"ds_write_b16_d16_hi v{T}, v{SC} offset:{L_QL}")
    e(f"""
    L_RS_q:
    s_mov_b64 exec, s[40:41]
    s_waitcnt lgkmcnt(0)
    s_barrier
    v_and_b32 v{T}, 7, v1
    v_lshlrev_b32 v{T}, 4, v{T}
    """)
    for t in range(3):
        e(f"ds_read_b128 v[{Q+4*t}:{Q+4*t+3}], v{T} offset:{L_QL+128*t}")
    for k in range(24):
        e(f"v_mov_b32 v{ACC+k}, 0")
    e(f"""
    s_cmp_lg_u32 s12, 0
    s_cbranch_scc1 L_NOSIG
    s_mov_b64 s[40:41], exec
    s_mov_b64 exec, 1
    v_mov_b32 v{T+4}, 0
    v_mov_b32 v{T+5}, 1
    global_atomic_add v{T+4}, v{T+5}, s[86:87]
    s_mov_b64 exec, s[40:41]
    s_branch L_SIGD
    L_NOSIG:
    v_mov_b32 v{T+4}, 0
    global_load_dword v{T+5}, v{T+4}, s[86:87] sc1
    L_SIGD:
    s_waitcnt lgkmcnt(0)
    """)
    issued.append(-2)
    for gi in range(64):
        i = NW + gi
        B = BUF + 12*(i % D)
        wait_for(i)
        for t in range(3):
            e(f"v_mov_b32 v{T+t}, 0")
        for j in range(4):
            for t in range(3):
                e(f"v_dot2c_f32_bf16 v{T+t}, v{B+4*t+j}, v{Q+4*t+j}")
        issue(i + D)
        e(f"v_add_f32 v{T}, v{T}, v{T+1}")
        e(f"v_add_f32 v{T}, v{T}, v{T+2}")
        e("s_nop 1")
        e(f"v_add_f32_dpp v{T+1}, v{T}, v{T} quad_perm:[1,0,3,2] {DPP}")
        e("s_nop 1")
        e(f"v_add_f32_dpp v{T}, v{T+1}, v{T+1} quad_perm:[2,3,0,1] {DPP}")
        e("s_nop 1")
        e(f"v_add_f32_dpp v{T+1}, v{T}, v{T} row_half_mirror {DPP}")
        rnd(e, T+1)
        e(f"v_mul_f32 v{SC+gi}, s37, v{T+1}")
        rnd(e, SC+gi)
        if gi == 40:
            e(f"v_mov_b32 v{T+4}, 0")
            e(f"global_load_dword v{T+7}, v{T+4}, s[86:87] sc1")
            issued.append(-3)
    e(f"v_max3_f32 v{T}, v{SC}, v{SC+1}, v{SC+2}")
    for g in range(3, 63, 2):
        e(f"v_max3_f32 v{T}, v{T}, v{SC+g}, v{SC+g+1}")
    e(f"v_max_f32 v{T}, v{T}, v{SC+63}")
    e("s_nop 1")
    e(f"v_max_f32_dpp v{T+1}, v{T}, v{T} row_ror:8 {DPP}")
    rows_combine(e, "v_max_f32", T+1, 44)
    e(f"v_mov_b32 v{T+2}, 0")
    for g in range(64):
        e(f"v_sub_f32 v{T}, v{SC+g}, v{T+1}")
        e(f"v_mul_f32 v{T}, s36, v{T}")
        e(f"v_exp_f32 v{T}, v{T}")
        e("s_nop 0")
        e(f"v_add_f32 v{T+2}, v{T+2}, v{T}")
    e("s_nop 1")
    e(f"v_add_f32_dpp v{T+3}, v{T+2}, v{T+2} row_ror:8 {DPP}")
    rows_combine(e, "v_add_f32", T+3, 44)
    e(f"""
    v_readfirstlane_b32 s13, v{T+7}
    s_nop 3
    L_INITCHK:
    s_cmp_eq_u32 s13, 256
    s_cbranch_scc1 L_INITOK
    s_sleep 2
    v_mov_b32 v{T+4}, 0
    global_load_dword v{T+7}, v{T+4}, s[86:87] sc1
    s_waitcnt vmcnt(0)
    v_readfirstlane_b32 s13, v{T+7}
    s_nop 3
    s_branch L_INITCHK
    L_INITOK:
    v_or_b32 v{T+4}, 1, v{T+1}
    v_or_b32 v{T+5}, 1, v{T+3}
    s_lshl_b32 s13, s12, 3
    s_add_u32 s13, s13, s42
    s_add_u32 s13, s13, {O_ST}
    v_mov_b32 v{T+6}, s13
    v_lshrrev_b32 v{T+7}, 2, v1
    s_lshl_b32 s13, s10, 2
    v_add_u32 v{T+7}, s13, v{T+7}
    v_mul_u32_u24 v{T+7}, {BLK}, v{T+7}
    v_and_b32 v{T}, 3, v1
    v_lshl_add_u32 v{T+7}, v{T}, 3, v{T+7}
    s_mov_b64 s[40:41], exec
    s_mov_b64 exec, 1
    global_store_dwordx2 v{T+6}, v[{T+4}:{T+5}], {WS} sc1
    s_mov_b64 exec, 0xffff
    """)
    spin(e, "L_ST", [f"global_load_dwordx2 v[{T+4}:{T+5}], v{T+7}, {WS} offset:{O_ST} sc1"], [T+4, T+5], T)
    issued.clear()
    e(f"v_and_b32 v{T+4}, -2, v{T+4}")
    e(f"v_mov_b32 v{T}, v{T+4}")
    row16_reduce(e, "v_max_f32", T, T+1)
    e(f"v_sub_f32 v{T+1}, v{T+4}, v{T}")
    e(f"v_mul_f32 v{T+1}, s36, v{T+1}")
    e(f"v_exp_f32 v{T+1}, v{T+1}")
    e("s_nop 0")
    e(f"v_mul_f32 v{T+1}, v{T+1}, v{T+5}")
    row16_reduce(e, "v_add_f32", T+1, T+2)
    e(f"v_rcp_f32 v{T+2}, v{T+1}")
    e("s_nop 0")
    e(f"v_fma_f32 v{T+3}, -v{T+1}, v{T+2}, 1.0")
    e(f"v_fma_f32 v{T+2}, v{T+3}, v{T+2}, v{T+2}")
    e("s_nop 0")
    e(f"v_readfirstlane_b32 s38, v{T}")
    e(f"v_readfirstlane_b32 s39, v{T+2}")
    e("s_mov_b64 exec, s[40:41]")
    e("s_nop 1")
    for g in range(64):
        e(f"v_subrev_f32 v{T}, s38, v{SC+g}")
        e(f"v_mul_f32 v{T}, s36, v{T}")
        e(f"v_exp_f32 v{T}, v{T}")
        e("s_nop 0")
        e(f"v_mul_f32 v{T}, s39, v{T}")
        e(f"v_cvt_pk_bf16_f32 v{SC+g}, v{T}, 0")
    e(f"""
    v_mul_u32_u24 v4, 205, v0
    v_lshrrev_b32 v4, 14, v4
    v_mul_u32_u24 v5, 80, v4
    v_sub_u32 v5, v0, v5
    s_mul_i32 s13, s14, 192
    s_mul_i32 s43, s11, 48
    s_add_u32 s13, s13, s43
    v_lshl_add_u32 v6, v4, 4, s13
    v_mul_u32_u24 v6, 1280, v6
    v_lshl_add_u32 v6, v5, 4, v6
    s_min_u32 s43, s3, 191
    s_lshl_b32 s13, s43, 4
    v_mul_u32_u24 v7, 3072, v0
    v_add_u32 v7, s13, v7
    v_add_u32 v8, {256*3072}, v7
    v_add_u32 v9, 512, v0
    v_min_u32 v9, 639, v9
    v_mul_u32_u24 v9, 3072, v9
    v_add_u32 v9, s13, v9
    s_mul_i32 s13, s43, {8*1280}
    v_lshl_add_u32 v10, v5, 4, s13
    s_mov_b32 s27, 0
    """)
    tail = [("wo", k) for k in range(16)] + [("w1", k) for k in range(3)] + [("w2", k) for k in range(8)]
    treg = {}
    def issue_tail(slot):
        B = BUF + 12*slot
        for t in range(3):
            if not tail: return
            kind, k = tail.pop(0)
            R = B + 4*t
            treg[(kind, k)] = R
            if kind == "wo":
                e(f"buffer_load_dwordx4 v[{R}:{R+3}], v6, s[32:35], s27 offen nt")
                e("s_add_u32 s27, s27, 1280")
            elif kind == "w1":
                e(f"global_load_dwordx4 v[{R}:{R+3}], v{7+k}, s[76:77] nt")
            else:
                e(f"global_load_dwordx4 v[{R}:{R+3}], v10, s[80:81] offset:{1280*(k%3)} nt")
                if k % 3 == 2:
                    e("v_add_u32 v10, 3840, v10")
            issued.append(-5)
    for gi in range(64):
        i = NW + 64 + gi
        B = BUF + 12*(i % D)
        if i in issued:
            wait_for(i)
        e(f"v_lshlrev_b32 v{T}, 16, v{SC+gi}")
        for t in range(3):
            for j in range(4):
                e(f"v_dot2c_f32_bf16 v{ACC+8*t+2*j}, v{B+4*t+j}, v{SC+gi}")
                e(f"v_dot2c_f32_bf16 v{ACC+8*t+2*j+1}, v{B+4*t+j}, v{T}")
        if i + D < NTOT:
            issue(i + D)
        else:
            issue_tail(i % D)
    assert not tail
    lds_reduce192("o")
    e(f"""
    v_or_b32 v{SC}, 1, v{SC}
    v_add_u32 v{T}, s42, v{T}
    global_store_dword v{T}, v{SC}, {WS} offset:{O_OP} sc1
    L_RS_o:
    s_mov_b64 exec, s[40:41]
    """)
    e(f"""
    s_cmp_lg_u32 s12, 0
    s_cbranch_scc1 L_A_SKIP
    v_cmp_gt_u32 vcc, 48, v0
    s_and_saveexec_b64 s[40:41], vcc
    s_mul_i32 s13, s10, {4*BLK}
    s_mul_i32 s43, s11, 192
    s_add_u32 s13, s13, s43
    v_lshl_add_u32 v{T+1}, v0, 2, s13
    v_add_u32 v{T+2}, {BLK}, v{T+1}
    v_add_u32 v{T+3}, {2*BLK}, v{T+1}
    v_add_u32 v{T+4}, {3*BLK}, v{T+1}
    """)
    spin(e, "L_A", [f"global_load_dword v{SC+j}, v{T+1+j}, {WS} offset:{O_OP} sc1" for j in range(4)], [SC, SC+1, SC+2, SC+3], T)
    e(f"v_add_f32 v{SC}, v{SC}, v{SC+1}")
    e(f"v_add_f32 v{SC+2}, v{SC+2}, v{SC+3}")
    e(f"v_add_f32 v{SC}, v{SC}, v{SC+2}")
    rnd(e, SC)
    e(f"""
    v_lshlrev_b32 v{T}, 2, v0
    ds_write_b32 v{T}, v{SC} offset:{L_XN}
    s_mov_b64 exec, s[40:41]
    L_A_SKIP:
    s_waitcnt lgkmcnt(0)
    s_barrier
    v_min_u32 v{T}, 2, v4
    v_lshlrev_b32 v{T}, 6, v{T}
    """)
    O = SC + 8
    for k in range(4):
        e(f"ds_read_b128 v[{O+4*k}:{O+4*k+3}], v{T} offset:{L_XN+16*k}")
    for k in range(8):
        e(f"v_mov_b32 v{ACC+k}, 0")
    e("s_waitcnt vmcnt(0) lgkmcnt(0)")
    for k in range(16):
        R = treg[("wo", k)]
        e(f"v_lshrrev_b32 v{T}, 16, v{O+k}")
        for j in range(4):
            e(f"v_dot2c_f32_bf16 v{ACC+2*j}, v{R+j}, v{T}")
            e(f"v_dot2c_f32_bf16 v{ACC+2*j+1}, v{R+j}, v{O+k}")
    e(f"""
    s_nop 3
    v_mul_u32_u24 v{T}, 2560, v4
    v_lshl_add_u32 v{T}, v5, 5, v{T}
    ds_write_b128 v{T}, v[{ACC}:{ACC+3}] offset:{L_RED}
    ds_write_b128 v{T}, v[{ACC+4}:{ACC+7}] offset:{L_RED+16}
    s_waitcnt lgkmcnt(0)
    s_barrier
    v_cmp_gt_u32 vcc, 160, v0
    s_and_saveexec_b64 s[40:41], vcc
    s_cbranch_execz L_A2
    v_lshlrev_b32 v{T}, 4, v0
    ds_read_b128 v[{SC}:{SC+3}], v{T} offset:{L_RED}
    ds_read_b128 v[{SC+4}:{SC+7}], v{T} offset:{L_RED+2560}
    ds_read_b128 v[{SC+8}:{SC+11}], v{T} offset:{L_RED+5120}
    s_waitcnt lgkmcnt(0)
    """)
    for k in range(4):
        e(f"v_add_f32 v{SC+k}, v{SC+k}, v{SC+4+k}")
        e(f"v_add_f32 v{SC+k}, v{SC+k}, v{SC+8+k}")
        e(f"v_or_b32 v{SC+k}, 1, v{SC+k}")
    e(f"""
    v_add_u32 v{T}, s42, v{T}
    global_store_dwordx4 v{T}, v[{SC}:{SC+3}], {WS} offset:{O_A} sc1
    L_A2:
    s_mov_b64 exec, s[40:41]
    s_barrier
    """)
    def reduce8(tag):
        e(f"""
        s_waitcnt lgkmcnt(0)
        s_barrier
        s_cmp_lg_u32 s12, 0
        s_cbranch_scc1 L_{tag}_W
        v_lshrrev_b32 v{T}, 3, v0
        v_lshlrev_b32 v{T}, 9, v{T}
        v_and_b32 v{T+1}, 7, v0
        v_lshl_add_u32 v{T}, v{T+1}, 2, v{T}
        """)
        R = SC + 20
        for r in range(16):
            e(f"ds_read_b32 v{R+r}, v{T} offset:{L_RED+32*r}")
        e("s_waitcnt lgkmcnt(0)")
        for st in (1, 2, 4, 8):
            for r in range(0, 16, 2*st):
                e(f"v_add_f32 v{R+r}, v{R+r}, v{R+r+st}")
        e(f"v_lshlrev_b32 v{T}, 2, v0")
        e(f"ds_write_b32 v{T}, v{R} offset:{L_RED+4096}")
        e("s_waitcnt lgkmcnt(0)")
        e(f"v_lshlrev_b32 v{T}, 2, v{T+1}")
        for p in range(8):
            e(f"ds_read_b32 v{R+p}, v{T} offset:{L_RED+4096+32*p}")
        e("s_waitcnt lgkmcnt(0)")
        for st in (1, 2, 4):
            for r in range(0, 8, 2*st):
                e(f"v_add_f32 v{R+r}, v{R+r}, v{R+r+st}")
    HREG = 11
    e(f"""
    s_cmp_ge_u32 s3, 160
    s_cbranch_scc1 L_B_SKIP
    s_cmp_ge_u32 s3, 80
    s_cselect_b32 s50, 1, 0
    s_mul_i32 s51, s50, 80
    s_sub_u32 s51, s3, s51
    v_lshrrev_b32 v{T+1}, 1, v0
    s_lshl_b32 s13, s50, 7
    v_add_u32 v{T+1}, s13, v{T+1}
    v_mul_u32_u24 v{T+1}, {BLK}, v{T+1}
    v_and_b32 v{T+2}, 1, v0
    v_lshl_add_u32 v{T+1}, v{T+2}, 4, v{T+1}
    s_lshl_b32 s13, s51, 5
    v_add_u32 v{T+1}, s13, v{T+1}
    """)
    spin(e, "L_B", [f"global_load_dwordx4 v[{SC}:{SC+3}], v{T+1}, {WS} offset:{O_A} sc1"], [SC, SC+1, SC+2, SC+3], T)
    e(f"v_lshlrev_b32 v{T}, 4, v0")
    e(f"ds_write_b128 v{T}, v[{SC}:{SC+3}] offset:{L_RED}")
    reduce8("B")
    R = SC + 20
    rnd(e, R)
    e(f"""
    v_cmp_gt_u32 vcc, 8, v0
    s_and_saveexec_b64 s[40:41], vcc
    s_lshl_b32 s13, s3, 3
    v_add_u32 v{T}, s13, v0
    v_lshlrev_b32 v{T}, 1, v{T}
    global_load_ushort v{T+1}, v{T}, s[64:65]
    s_waitcnt vmcnt(0)
    v_lshlrev_b32 v{T+1}, 16, v{T+1}
    v_add_f32 v{HREG}, v{T+1}, v{R}
    """)
    rnd(e, HREG)
    e(f"""
    v_or_b32 v{T+1}, 1, v{HREG}
    v_lshl_add_u32 v{T}, v0, 2, s42
    global_store_dword v{T}, v{T+1}, {WS} offset:{O_H} sc1
    s_mov_b64 exec, s[40:41]
    L_B_W:
    L_B_SKIP:
    s_barrier
    """)
    RED = 6144; RED2 = L_XN; R2 = L_QL
    e(f"""
    s_cmp_ge_u32 s3, 192
    s_cbranch_scc1 L_C_SKIP
    s_cmp_ge_u32 s12, 2
    s_cbranch_scc1 L_C_NOLN
    s_mul_i32 s13, s12, 80
    v_lshrrev_b32 v{T+1}, 2, v1
    v_add_u32 v{T+1}, s13, v{T+1}
    v_mul_u32_u24 v{T+1}, {BLK}, v{T+1}
    v_and_b32 v{T+2}, 3, v1
    v_lshl_add_u32 v{T+1}, v{T+2}, 3, v{T+1}
    """)
    X = SC + 40
    for i in range(1, 5):
        e(f"v_add_u32 v{SC+30+i}, {16*BLK*i}, v{T+1}")
    e(f"v_mov_b32 v{SC+30}, v{T+1}")
    spin(e, "L_C", [f"global_load_dwordx2 v[{X+2*i}:{X+2*i+1}], v{SC+30+i}, {WS} offset:{O_H} sc1" for i in range(5)], [X+i for i in range(10)], T)
    for i in range(10):
        e(f"v_and_b32 v{X+i}, -2, v{X+i}")
    ln_compute(e, X, SC+50, 44, 48)
    e("s_mul_i32 s13, s12, 3072")
    e(f"v_lshl_add_u32 v{T}, v1, 3, s13")
    for i in range(5):
        e(f"ds_write_b64 v{T}, v[{X+2*i}:{X+2*i+1}] offset:{L_RED+512*i}")
    e(f"v_mov_b32 v{T+2}, 0")
    e(f"v_mov_b32 v{T+3}, 0")
    e(f"ds_write_b64 v{T}, v[{T+2}:{T+3}] offset:{L_RED+2560}")
    e(f"""
    L_C_NOLN:
    s_waitcnt lgkmcnt(0)
    s_barrier
    v_lshlrev_b32 v{T}, 2, v0
    """)
    HN = SC
    for b in range(2):
        for i in range(3):
            e(f"ds_read_b32 v{HN+3*b+i}, v{T} offset:{L_RED+b*3072+i*1024}")
    for k in range(16):
        e(f"v_mov_b32 v{ACC+k}, 0")
    e("s_waitcnt lgkmcnt(0)")
    for i in range(3):
        R = treg[("w1", i)]
        for b in range(2):
            xh = HN + 3*b + i
            e(f"v_lshrrev_b32 v{T+1}, 16, v{xh}")
            for j in range(4):
                e(f"v_dot2c_f32_bf16 v{ACC+8*b+2*j}, v{R+j}, v{T+1}")
                e(f"v_dot2c_f32_bf16 v{ACC+8*b+2*j+1}, v{R+j}, v{xh}")
    e("s_nop 3")
    e(f"v_lshlrev_b32 v{T}, 6, v0")
    for k in range(4):
        e(f"ds_write_b128 v{T}, v[{ACC+4*k}:{ACC+4*k+3}] offset:{RED+16*k}")
    e(f"""
    s_waitcnt lgkmcnt(0)
    s_barrier
    v_lshrrev_b32 v{T}, 4, v0
    v_lshlrev_b32 v{T}, 10, v{T}
    v_and_b32 v{T+1}, 15, v0
    v_lshl_add_u32 v{T}, v{T+1}, 2, v{T}
    """)
    R = SC + 20
    for r in range(16):
        e(f"ds_read_b32 v{R+r}, v{T} offset:{RED+64*r}")
    e("s_waitcnt lgkmcnt(0)")
    for st in (1, 2, 4, 8):
        for r in range(0, 16, 2*st):
            e(f"v_add_f32 v{R+r}, v{R+r}, v{R+r+st}")
    e(f"""
    v_lshlrev_b32 v{T}, 2, v0
    ds_write_b32 v{T}, v{R} offset:{RED2}
    s_waitcnt lgkmcnt(0)
    s_barrier
    v_cmp_gt_u32 vcc, 16, v0
    s_and_saveexec_b64 s[40:41], vcc
    s_cbranch_execz L_C_NOACT
    """)
    for r in range(16):
        e(f"ds_read_b32 v{R+r}, v{T} offset:{RED2+64*r}")
    e(f"""
    v_and_b32 v{T+1}, 7, v0
    s_lshl_b32 s13, s3, 3
    v_add_u32 v{T+1}, s13, v{T+1}
    v_lshlrev_b32 v{T+1}, 1, v{T+1}
    global_load_ushort v{T+2}, v{T+1}, s[78:79]
    s_waitcnt lgkmcnt(0)
    """)
    for st in (1, 2, 4, 8):
        for r in range(0, 16, 2*st):
            e(f"v_add_f32 v{R+r}, v{R+r}, v{R+r+st}")
    rnd(e, R)
    e("s_waitcnt vmcnt(0)")
    e(f"v_lshlrev_b32 v{T+2}, 16, v{T+2}")
    e(f"v_add_f32 v{R}, v{R}, v{T+2}")
    rnd(e, R)
    e(f"v_max_f32 v{R}, 0, v{R}")
    e(f"v_mul_f32 v{R}, v{R}, v{R}")
    rnd(e, R)
    e(f"""
    ds_write_b32 v{T}, v{R} offset:{R2}
    L_C_NOACT:
    s_mov_b64 exec, s[40:41]
    s_waitcnt lgkmcnt(0)
    s_barrier
    v_cmp_gt_u32 vcc, 160, v0
    s_and_saveexec_b64 s[40:41], vcc
    s_cbranch_execz L_C_END
    v_lshlrev_b32 v{T}, 5, v4
    ds_read_b128 v[{R}:{R+3}], v{T} offset:{R2}
    ds_read_b128 v[{R+4}:{R+7}], v{T} offset:{R2+16}
    """)
    for k in range(8):
        e(f"v_mov_b32 v{ACC+k}, 0")
    e("s_waitcnt lgkmcnt(0)")
    for k in range(8):
        W2 = treg[("w2", k)]
        e(f"v_lshrrev_b32 v{T+1}, 16, v{R+k}")
        for j in range(4):
            e(f"v_dot2c_f32_bf16 v{ACC+2*j}, v{W2+j}, v{T+1}")
            e(f"v_dot2c_f32_bf16 v{ACC+2*j+1}, v{W2+j}, v{R+k}")
    e("s_nop 3")
    for k in range(8):
        e(f"v_or_b32 v{ACC+k}, 1, v{ACC+k}")
    e(f"""
    v_mul_u32_u24 v{T}, 2560, v4
    v_lshl_add_u32 v{T}, v5, 5, v{T}
    v_add_u32 v{T}, s42, v{T}
    global_store_dwordx4 v{T}, v[{ACC}:{ACC+3}], {WS} offset:{O_F} sc1
    global_store_dwordx4 v{T}, v[{ACC+4}:{ACC+7}], {WS} offset:{O_F+16} sc1
    L_C_END:
    s_mov_b64 exec, s[40:41]
    L_C_SKIP:
    s_barrier
    """)
    e(f"""
    s_cmp_ge_u32 s3, 160
    s_cbranch_scc1 L_END
    v_lshrrev_b32 v{T+1}, 1, v0
    v_mul_u32_u24 v{T+1}, {BLK}, v{T+1}
    v_and_b32 v{T+2}, 1, v0
    v_lshl_add_u32 v{T+1}, v{T+2}, 4, v{T+1}
    s_mul_i32 s13, s50, 2560
    s_lshl_b32 s43, s51, 5
    s_add_u32 s13, s13, s43
    v_add_u32 v{T+1}, s13, v{T+1}
    s_cmp_ge_u32 s12, 2
    s_cbranch_scc1 L_D_ONE
    v_add_u32 v{T+2}, {128*BLK}, v{T+1}
    """)
    spin(e, "L_D2", [f"global_load_dwordx4 v[{SC}:{SC+3}], v{T+1}, {WS} offset:{O_F} sc1",
                     f"global_load_dwordx4 v[{SC+4}:{SC+7}], v{T+2}, {WS} offset:{O_F} sc1"], [SC+k for k in range(8)], T)
    for k in range(4):
        e(f"v_add_f32 v{SC+k}, v{SC+k}, v{SC+4+k}")
    e("s_branch L_D_J")
    e("L_D_ONE:")
    spin(e, "L_D1", [f"global_load_dwordx4 v[{SC}:{SC+3}], v{T+1}, {WS} offset:{O_F} sc1"], [SC+k for k in range(4)], T)
    e("L_D_J:")
    e(f"v_lshlrev_b32 v{T}, 4, v0")
    e(f"ds_write_b128 v{T}, v[{SC}:{SC+3}] offset:{L_RED}")
    reduce8("D")
    R = SC + 20
    rnd(e, R)
    e(f"""
    v_cmp_gt_u32 vcc, 8, v0
    s_and_saveexec_b64 s[40:41], vcc
    s_lshl_b32 s13, s51, 3
    v_add_u32 v{T}, s13, v0
    v_lshlrev_b32 v{T}, 1, v{T}
    global_load_ushort v{T+1}, v{T}, s[82:83]
    s_waitcnt vmcnt(0)
    v_lshlrev_b32 v{T+1}, 16, v{T+1}
    v_add_f32 v{R}, v{R}, v{T+1}
    """)
    rnd(e, R)
    e(f"v_add_f32 v{R}, v{HREG}, v{R}")
    rnd(e, R)
    e(f"""
    s_lshl_b32 s13, s3, 3
    v_add_u32 v{T}, s13, v0
    v_lshlrev_b32 v{T}, 1, v{T}
    global_store_short_d16_hi v{T}, v{R}, s[84:85]
    L_D_W:
    L_END:
    s_endpgm
    """)
    return e, T + 8

def main(out, D=12):
    hdr = Emitter()
    src = open("cdna_kernels/" + NAME + ".s.ref").read().split("\n")
    for ln in src:
        if ln.startswith(";") and "@launch" not in ln:
            hdr.raw(ln)
    hdr.raw(f"; @launch grid=(256,1,1) block=(256,1,1) lds={LDS_BYTES}")
    hdr.raw('.amdgcn_target "amdgcn-amd-amdhsa--gfx950"')
    hdr.raw(".text")
    e, nv = gen(D)
    e.raw('.section .rodata,"a"')
    e.raw(".p2align 6")
    e.raw(kd(KN, nv))
    open(out, "w").write(hdr.text() + e.text())

if __name__ == "__main__":
    main(sys.argv[1] if len(sys.argv) > 1 else "cdna_kernels/" + NAME + ".s", int(sys.argv[2]) if len(sys.argv) > 2 else 12)
```
